```python
import torch

def _softmax(x, axis=-1):
    return torch.softmax(x, dim=axis)
def _gelu(x):
    return torch.nn.functional.gelu(x, approximate="tanh")
def _silu(x):
    return torch.nn.functional.silu(x)
def _sigmoid(x):
    return torch.sigmoid(x)
def _layernorm(x, axis=-1, eps=1e-5):
    m = x.mean(dim=axis, keepdim=True)
    v = x.var(dim=axis, keepdim=True, unbiased=False)
    return (x - m) / torch.sqrt(v + eps)
def _scatter_add(tgt, idx, src, axis=0):
    return tgt.clone().index_add_(axis, idx, src)
def _segment_sum(src, seg, n):
    out = torch.zeros((n,) + src.shape[1:], dtype=src.dtype)
    return out.index_add_(0, seg, src)
def _pad(x, pw):
    flat = tuple(v for pair in reversed(pw) for v in pair)
    return torch.nn.functional.pad(x, flat)

kernel_name = 'standalone__seq2seq_rnn_t_joint__speech'

def setup_inputs():

    _w = (lambda a: (lambda t: t.to(torch.bfloat16) if t.is_floating_point() else t)(torch.as_tensor(a)))
    B, T, D, K = 2, 1000, 256, 15
    U = 8
    sc = (1.0 / (K * D)) ** 0.5
    sd = (1.0 / D) ** 0.5
    return {
        "x": _w((lambda *s: torch.randn(*s, dtype=torch.bfloat16) * 0.2)(B, T, D) * 0.5),
        "w1": _w((lambda *s: torch.randn(*s, dtype=torch.bfloat16) * 3.2)(K, D, D) * sc),
        "w2": _w((lambda *s: torch.randn(*s, dtype=torch.bfloat16) * 3.2)(K, D, D) * sc),
        "g": _w((lambda *s: torch.randn(*s, dtype=torch.bfloat16) * 3.2)(B, U, D) * 0.5),
        "w_f": _w((lambda *s: torch.randn(*s, dtype=torch.bfloat16) * 3.2)(D, D) * sd),
        "w_g": _w((lambda *s: torch.randn(*s, dtype=torch.bfloat16) * 3.2)(D, D) * sd),
        "w_o": _w((lambda *s: torch.randn(*s, dtype=torch.bfloat16) * 3.2)(D, D) * sd),
    }

def reference(x, w1, w2, g, w_f, w_g, w_o):
    B, T, D = x.shape
    K = w1.shape[0]
    pad = K // 2
    xp = _pad(x, ((0,0),(pad,pad),(0,0)))
    h = torch.zeros_like(x)
    for i in range(K):
        h = h + torch.einsum("btc,cd->btd", xp[:, i:i+T, :], w1[i])
    h = _gelu(h)[:, ::2, :]
    T1 = h.shape[1]
    hp = _pad(h, ((0,0),(pad,pad),(0,0)))
    f = torch.zeros_like(h)
    for i in range(K):
        f = f + torch.einsum("btc,cd->btd", hp[:, i:i+T1, :], w2[i])
    f = _gelu(f)[:, ::2, :]
    fe = torch.einsum("btd,de->bte", f, w_f)
    ge = torch.einsum("bud,de->bue", g, w_g)
    j = torch.tanh(fe[:, :, None, :] + ge[:, None, :, :])
    return torch.einsum("btud,dv->btuv", j, w_o)
```

```python
import sys, struct
OUT = sys.argv[1] if len(sys.argv) > 1 else "standalone__seq2seq_rnn_t_joint__speech.s"
L = []
def A(s): L.append(s)
def f32(x): return "0x%08x" % struct.unpack("<I", struct.pack("<f", x))[0]

HP = 0x000000
FP = 0x200000
GE = 0x600000
WS_BYTES = 0x700000

C0 = -2.0 * 1.4426950408889634 * 0.7978845608028654
C1 = C0 * 0.044715
TANH_C = 2.0 * 1.4426950408889634

HDR = open("standalone__seq2seq_rnn_t_joint__speech.s.ref").read().split("; Override")[0]
A(HDR.rstrip())
A("; @launch kernel=stage_a_kernel grid=(256,1,1) block=(256,1,1) lds=142464")
A("; @launch kernel=stage_b_kernel grid=(257,1,1) block=(256,1,1) lds=3328")
A("; @launch kernel=stage_c_kernel grid=(256,1,1) block=(256,1,1) lds=9216")
A('.amdgcn_target "amdgcn-amd-amdhsa--gfx950"')
A(".text")

def kbegin(name):
    A(f".globl {name}\n.p2align 8\n.type {name},@function\n{name}:")

def srd(d, size):
    A(f"s_mov_b32 s{d+2}, {size}")
    A(f"s_mov_b32 s{d+3}, 0x20000")

def lane_wave():
    A("v_lshrrev_b32 v2, 6, v0")
    A("v_and_b32 v1, 63, v0")
    A("v_readfirstlane_b32 s3, v2")

def gelu(regs, tmp, sC0, sC1):
    n = len(regs)
    for x, t in zip(regs, tmp): A(f"v_mul_f32 v{t}, v{x}, v{x}")
    for x, t in zip(regs, tmp): A(f"v_fma_f32 v{t}, v{t}, s{sC1}, v{sC0}")
    for x, t in zip(regs, tmp): A(f"v_mul_f32 v{t}, v{t}, v{x}")
    for x, t in zip(regs, tmp): A(f"v_exp_f32 v{t}, v{t}")
    if n < 2: A("s_nop 0")
    for x, t in zip(regs, tmp): A(f"v_add_f32 v{t}, 1.0, v{t}")
    for x, t in zip(regs, tmp): A(f"v_rcp_f32 v{t}, v{t}")
    if n < 2: A("s_nop 0")
    for x, t in zip(regs, tmp): A(f"v_mul_f32 v{x}, v{x}, v{t}")

def stage_a():
    kbegin("stage_a_kernel")
    WB = 0; XB = 122880; XP = 1088
    A("s_load_dwordx4 s[4:7], s[0:1], 0")
    A("s_load_dwordx2 s[12:13], s[0:1], 72")
    A("s_cmp_ge_u32 s2, 256")
    A("s_cbranch_scc1 LA_end")
    lane_wave()
    A("s_and_b32 s16, s2, 7")
    A("s_lshr_b32 s17, s2, 3")
    A("s_and_b32 s18, s17, 15")
    A("s_lshr_b32 s19, s17, 4")
    A("s_lshr_b32 s20, s16, 1")
    A("s_and_b32 s21, s16, 1")
    A("s_lshl_b32 s21, s21, 1")
    A("s_add_u32 s21, s21, s19")
    A("s_lshr_b32 s22, s18, 3")
    A("s_and_b32 s23, s18, 7")
    A("v_lshrrev_b32 v3, 3, v1")
    A("v_and_b32 v7, 7, v1")
    A("v_lshlrev_b32 v4, 9, v3")
    A("v_lshl_add_u32 v5, v7, 4, v4")
    A("v_xor_b32 v8, 2, v7")
    A("v_lshl_add_u32 v6, v8, 4, v4")
    A("s_lshl_b32 s24, s23, 16")
    A("s_lshl_b32 s25, s20, 7")
    A("s_add_u32 s24, s24, s25")
    A("s_sub_u32 s25, s24, 3584")
    A("s_add_u32 s24, s24, 512")
    A("v_add_u32 v4, s25, v5")
    A("v_add_u32 v5, s24, v5")
    A("v_add_u32 v6, s24, v6")
    A("v_lshrrev_b32 v8, 1, v3")
    A("v_and_b32 v8, 1, v8")
    A("v_lshlrev_b32 v8, 1, v8")
    A("v_xor_b32 v8, v8, v7")
    A("v_lshlrev_b32 v9, 9, v3")
    A("v_lshl_add_u32 v10, v8, 4, v9")
    A("v_xor_b32 v8, 4, v8")
    A("v_lshl_add_u32 v9, v8, 4, v9")
    A("v_add_u32 v9, 3072, v9")
    A("s_lshl_b32 s26, s20, 15")
    A("s_lshl_b32 s27, s3, 13")
    A("s_add_u32 s26, s26, s27")
    A("s_lshl_b32 s27, s21, 7")
    A("s_add_u32 s26, s26, s27")
    A("s_lshl_b32 s27, s3, 11")
    A("v_lshrrev_b32 v11, 4, v1")
    A("v_and_b32 v12, 15, v1")
    A("v_bfe_u32 v13, v1, 2, 2")
    A("v_lshl_add_u32 v14, v11, 3, v13")
    A("v_lshlrev_b32 v14, 7, v14")
    A("v_lshrrev_b32 v13, 1, v13")
    A("v_and_b32 v15, 1, v11")
    A("v_lshl_or_b32 v13, v15, 1, v13")
    A("v_xor_b32 v13, s3, v13")
    A("v_lshl_add_u32 v14, v13, 5, v14")
    A("v_and_b32 v13, 3, v1")
    A("v_lshl_add_u32 v14, v13, 3, v14")
    A("v_add_u32 v15, 0x10000, v14")
    A(f"s_mov_b32 s28, {XP}")
    for e in range(3):
        A(f"v_add_u32 v13, {e}, v12")
        A(f"v_mul_lo_u32 v{16+e}, v13, s28")
        A("v_lshrrev_b32 v13, 1, v13")
        A("v_and_b32 v13, 2, v13")
        A("v_xor_b32 v13, v13, v11")
        A(f"v_lshl_add_u32 v{16+e}, v13, 4, v{16+e}")
        A(f"v_add_u32 v{16+e}, {XB}, v{16+e}")
    for r in range(20, 36): A(f"v_mov_b32 v{r}, 0")
    A("s_waitcnt lgkmcnt(0)")
    A("s_mul_i32 s28, s22, 512000")
    A("s_add_u32 s8, s4, s28")
    A("s_addc_u32 s9, s5, 0")
    srd(8, 512000)
    A("s_mov_b32 s4, s6")
    A("s_mov_b32 s5, s7")
    srd(4, 15*131072)
    srd(12, WS_BYTES)
    A(f"s_mul_i32 s28, s3, {XP}")
    A(f"s_add_u32 s28, s28, {XB}")
    A("s_lshl_b32 s29, s3, 12")
    A("s_sub_u32 s29, s29, 4096")
    A("s_mov_b32 m0, s28")
    A("s_cmp_eq_u32 s3, 0")
    A("s_cbranch_scc1 LA_x0")
    A("buffer_load_dwordx4 v5, s[8:11], s29 offen lds")
    A("s_branch LA_x1")
    A("LA_x0:")
    A("buffer_load_dwordx4 v4, s[8:11], 0 offen lds")
    A("LA_x1:")
    for r in range(1, 5):
        A(f"s_add_u32 m0, s28, {4*r*XP}")
        A(f"s_add_u32 s30, s29, {4*r*4096}")
        if r == 4:
            A("s_cmp_lt_u32 s3, 2")
            A("s_cbranch_scc1 LA_x2")
            A(f"s_add_u32 m0, s28, {4*3*XP}")
            A(f"s_add_u32 s30, s29, {4*3*4096}")
            A("buffer_load_dwordx4 v6, s[8:11], s30 offen lds")
            A("s_branch LA_x3")
            A("LA_x2:")
            A("buffer_load_dwordx4 v5, s[8:11], s30 offen lds")
            A("LA_x3:")
        else:
            A(f"buffer_load_dwordx4 v{6 if r & 1 else 5}, s[8:11], s30 offen lds")
    taps = list(range(0, 15, 2)) + list(range(1, 15, 2))
    for pos, i in enumerate(taps):
        A(f"s_add_u32 m0, s27, {WB + pos*8192}")
        A(f"s_add_u32 s30, s26, {i*131072}")
        A("buffer_load_dwordx4 v10, s[4:7], s30 offen lds")
        A("buffer_load_dwordx4 v9, s[4:7], s30 offen offset:1024 lds")
    groups = [3, 3, 2, 3, 2, 1, 1]
    assert sum(groups) == 15
    def xreg(o2, cg): return 40 + cg*20 + ((o2//2) % 5)*4
    def xread(o2, cg):
        e, rho = o2 // 8, o2 % 8
        r = xreg(o2, cg)
        A(f"ds_read_b128 v[{r}:{r+3}], v{16+e} offset:{rho*128 + cg*64}")
    def wreg(k): return 80 + (k % 4)*4
    def wread(pos, cg, k):
        off = WB + pos*8192 + cg*4096
        base = 14
        if off + 512 > 65535: off -= 65536; base = 15
        r = wreg(k)
        A(f"ds_read_b64_tr_b16 v[{r}:{r+1}], v{base} offset:{off}")
        A(f"ds_read_b64_tr_b16 v[{r+2}:{r+3}], v{base} offset:{off+512}")
    pos = 0
    k = 0
    for gi, gn in enumerate(groups):
        rem = 2*(15 - pos - gn)
        A(f"s_waitcnt vmcnt({rem})")
        A("s_barrier")
        steps = [(pos+t, cg) for t in range(gn) for cg in range(2)]
        def issue(st, kk):
            p, cg = st
            i = taps[p]
            n = 0
            if i < 2:
                for s in range(4): xread(i + 2*s, cg); n += 1
            else:
                xread(i + 6, cg); n += 1
            wread(p, cg, kk); n += 2
            return n
        issue(steps[0], k)
        for si, st in enumerate(steps):
            nxt = 0
            if si + 1 < len(steps): nxt = issue(steps[si+1], k+1)
            A(f"s_waitcnt lgkmcnt({nxt})")
            p, cg = st
            i = taps[p]
            w = wreg(k)
            for s in range(4):
                x = xreg(i + 2*s, cg)
                a = 20 + 4*s
                A(f"v_mfma_f32_16x16x32_bf16 v[{a}:{a+3}], v[{w}:{w+3}], v[{x}:{x+3}], v[{a}:{a+3}]")
            k += 1
        pos += gn
    A("s_lshl_b32 s28, s18, 4")
    A("s_lshl_b32 s29, s21, 2")
    A("s_add_u32 s28, s28, s29")
    A("s_add_u32 s28, s28, s3")
    A("s_lshl_b32 s28, s28, 2")
    A("s_add_u32 s28, s28, s20")
    A("s_lshl_b32 s28, s28, 11")
    if HP: A(f"s_add_u32 s28, s28, {HP}")
    A("v_lshlrev_b32 v2, 4, v1")
    A("s_nop 4")
    for sh in range(2):
        for q in range(2):
            a = 20 + 4*(2*sh+q)
            A(f"v_cvt_pk_bf16_f32 v{40+4*sh+2*q}, v{a}, v{a+1}")
            A(f"v_cvt_pk_bf16_f32 v{41+4*sh+2*q}, v{a+2}, v{a+3}")
    A("buffer_store_dwordx4 v[40:43], v2, s[12:15], s28 offen")
    A("buffer_store_dwordx4 v[44:47], v2, s[12:15], s28 offen offset:1024")
    A("LA_end:")
    A("s_endpgm")

def perm16(raw, dst, sLO, sHI):
    for jj in range(4):
        for d in range(2):
            a = raw + 2*(2*jj) + d; b = raw + 2*(2*jj+1) + d
            A(f"v_perm_b32 v{dst + 4*(2*d) + jj}, v{b}, v{a}, s{sLO}")
            A(f"v_perm_b32 v{dst + 4*(2*d+1) + jj}, v{b}, v{a}, s{sHI}")

def sel_matrix(dst, vr, vt, mode):
    if mode[0] == "eq":
        A(f"v_subrev_u32 v{vt}, {mode[1]}, v{vr}")
    else:
        A(f"v_lshrrev_b32 v{vt}, 2, v{vr}")
        A(f"v_lshlrev_b32 v{vt}, 1, v{vt}")
        A(f"v_and_b32 v{dst}, 3, v{vr}")
        A(f"v_add_u32 v{vt}, v{vt}, v{dst}")
        A(f"v_cmp_lt_u32 vcc, 1, v{dst}")
        A(f"v_mov_b32 v{dst+1}, 99")
        A("s_nop 0")
        A(f"v_cndmask_b32 v{vt}, v{vt}, v{dst+1}, vcc")
    A(f"v_mov_b32 v{vt+1}, 0x3f80")
    A(f"v_mov_b32 v{vt+2}, 0x3f800000")
    for d in range(4):
        A(f"v_cmp_eq_u32 vcc, {2*d}, v{vt}")
        A("s_nop 1")
        A(f"v_cndmask_b32 v{dst+d}, 0, v{vt+1}, vcc")
        A(f"v_cmp_eq_u32 vcc, {2*d+1}, v{vt}")
        A("s_nop 1")
        A(f"v_cndmask_b32 v{dst+d}, v{dst+d}, v{vt+2}, vcc")

def stage_b():
    kbegin("stage_b_kernel")
    A("s_load_dwordx4 s[4:7], s[0:1], 16")
    A("s_load_dwordx2 s[16:17], s[0:1], 40")
    A("s_load_dwordx2 s[12:13], s[0:1], 72")
    A("s_cmp_ge_u32 s2, 257")
    A("s_cbranch_scc1 LB_end")
    lane_wave()
    A("v_lshrrev_b32 v11, 4, v1")
    A("v_and_b32 v12, 15, v1")
    A("s_mov_b32 s40, 0x05040100")
    A("s_mov_b32 s41, 0x07060302")
    A("s_cmp_eq_u32 s2, 256")
    A("s_cbranch_scc1 LB_ge")
    A("s_and_b32 s20, s2, 7")
    A("s_lshr_b32 s21, s2, 3")
    A("s_and_b32 s18, s21, 15")
    A("s_lshr_b32 s19, s21, 4")
    A("s_lshl_b32 s20, s20, 1")
    A("s_add_u32 s20, s20, s19")
    A("s_and_b32 s23, s18, 7")
    A("v_lshrrev_b32 v3, 1, v11")
    A("v_lshlrev_b32 v3, 17, v3")
    A("v_and_b32 v4, 1, v11")
    A("v_lshl_add_u32 v3, v4, 12, v3")
    A("v_lshl_add_u32 v3, v12, 3, v3")
    A("s_lshl_b32 s24, s20, 13")
    A("s_lshl_b32 s25, s3, 7")
    A("s_add_u32 s24, s24, s25")
    A("v_lshlrev_b32 v4, 11, v11")
    A("v_lshl_add_u32 v4, v12, 4, v4")
    A("s_lshl_b32 s25, s18, 4")
    A("s_add_u32 s25, s25, s20")
    A("s_lshl_b32 s25, s25, 13")
    A("s_lshl_b32 s26, s3, 8")
    A("s_add_u32 s26, s26, s25")
    A("v_lshlrev_b32 v5, 11, v11")
    A("v_lshrrev_b32 v6, 3, v12")
    A("v_lshl_add_u32 v5, v6, 10, v5")
    A("v_bfe_u32 v7, v12, 1, 2")
    A("v_lshl_add_u32 v5, v7, 8, v5")
    A("v_and_b32 v8, 1, v12")
    A("v_lshl_add_u32 v5, v8, 4, v5")
    A("s_sub_u32 s27, s25, 0x20000")
    A("s_cmp_eq_u32 s23, 0")
    A("s_cselect_b32 s27, s25, s27")
    A("s_add_u32 s28, s25, 0x20000")
    A("s_cmp_eq_u32 s23, 7")
    A("s_cselect_b32 s28, s25, s28")
    A("s_waitcnt lgkmcnt(0)")
    srd(4, 15*131072)
    srd(12, WS_BYTES)
    A("buffer_load_dwordx4 v[24:27], v4, s[12:15], s26 offen")
    A("buffer_load_dwordx4 v[28:31], v4, s[12:15], s26 offen offset:1024")
    A("buffer_load_dwordx4 v[32:35], v5, s[12:15], s27 offen offset:224")
    A("buffer_load_dwordx4 v[36:39], v5, s[12:15], s28 offen")
    RAW = 64
    def w2load(a):
        A(f"s_add_u32 s29, s24, {a*262144}")
        for j in range(8):
            r = RAW + (a % 4)*16 + 2*j
            A(f"buffer_load_dwordx2 v[{r}:{r+1}], v3, s[4:7], s29 offen offset:{j*512}")
    for a in range(4): w2load(a)
    sel_matrix(16, 12, 8, ("eq", 0))
    sel_matrix(20, 12, 8, ("eq", 8))
    A(f"v_mov_b32 v13, {f32(C0)}")
    A(f"s_mov_b32 s42, {f32(C1)}")
    A("v_lshl_add_u32 v8, v12, 2, v11")
    A("v_add_u32 v9, 7, v8")
    A("v_lshrrev_b32 v10, 2, v9")
    A("v_mul_u32_u24 v14, 160, v10")
    A("v_and_b32 v9, 3, v9")
    A("v_lshl_add_u32 v14, v9, 5, v14")
    A("s_lshl_b32 s29, s3, 3")
    A("v_add_u32 v14, s29, v14")
    A("s_lshl_b32 s29, s23, 6")
    A("v_add_u32 v8, s29, v8")
    A("s_movk_i32 s30, 500")
    A("v_cmp_gt_u32 s[44:45], s30, v8")
    A("v_and_b32 v8, 1, v11")
    A("v_lshl_add_u32 v8, v6, 1, v8")
    A("v_and_b32 v9, 1, v12")
    A("v_lshl_add_u32 v8, v9, 2, v8")
    A("v_add_u32 v9, 71, v8")
    A("v_subrev_u32 v8, 1, v8")
    A("v_cmp_le_u32 vcc, 2, v11")
    A("s_nop 1")
    A("v_cndmask_b32 v8, v8, v9, vcc")
    A("v_min_u32 v8, 79, v8")
    A("v_lshrrev_b32 v10, 2, v8")
    A("v_mul_u32_u24 v15, 160, v10")
    A("v_and_b32 v9, 3, v8")
    A("v_lshl_add_u32 v15, v9, 5, v15")
    A("v_lshl_add_u32 v15, v7, 3, v15")
    A("s_cmp_lg_u32 s23, 0")
    A("s_cselect_b32 s46, -1, 0")
    A("s_cmp_lg_u32 s23, 7")
    A("s_cselect_b32 s47, -1, 0")
    A("v_mul_u32_u24 v10, 160, v12")
    A("v_lshl_add_u32 v10, v11, 4, v10")
    for r in range(40, 48): A(f"v_mov_b32 v{r}, 0")
    A("s_waitcnt vmcnt(32)")
    A("v_mfma_f32_16x16x32_bf16 v[40:43], v[16:19], v[24:27], v[40:43]")
    A("v_mfma_f32_16x16x32_bf16 v[44:47], v[16:19], v[32:35], v[44:47]")
    A("v_mfma_f32_16x16x32_bf16 v[40:43], v[20:23], v[28:31], v[40:43]")
    A("v_mfma_f32_16x16x32_bf16 v[44:47], v[20:23], v[36:39], v[44:47]")
    A("s_nop 7")
    gelu(list(range(40, 48)), list(range(48, 56)), 13, 42)
    A("v_cvt_pk_bf16_f32 v40, v40, v41")
    A("v_cvt_pk_bf16_f32 v41, v42, v43")
    A("v_cvt_pk_bf16_f32 v42, v44, v45")
    A("v_cvt_pk_bf16_f32 v43, v46, v47")
    A("v_cndmask_b32 v40, 0, v40, s[44:45]")
    A("v_cndmask_b32 v41, 0, v41, s[44:45]")
    A("v_cndmask_b32 v42, 0, v42, s[46:47]")
    A("v_cndmask_b32 v43, 0, v43, s[46:47]")
    A("ds_write_b64 v14, v[40:41]")
    A("ds_write_b64 v15, v[42:43]")
    A("s_waitcnt lgkmcnt(0)")
    A("s_barrier")
    for o in range(9):
        A(f"ds_read_b128 v[{24+4*o}:{27+4*o}], v10 offset:{(o//2)*160 + (o%2)*64}")
    FR = 128
    for a in range(8):
        rem = 8*(3) if a < 4 else 8*(7-a)
        A(f"s_waitcnt vmcnt({rem})")
        perm16(RAW + (a % 4)*16, FR + a*16, 40, 41)
        if a < 4: w2load(a+4)
    for r in range(64, 96): A(f"v_mov_b32 v{r}, 0")
    A("s_waitcnt lgkmcnt(0)")
    for a in range(8):
        for s in range(2):
            for q in range(4):
                ac = 64 + (s*4+q)*4; w = FR + a*16 + 4*q; x = 24 + 4*(a+s)
                A(f"v_mfma_f32_16x16x32_bf16 v[{ac}:{ac+3}], v[{w}:{w+3}], v[{x}:{x+3}], v[{ac}:{ac+3}]")
    A("v_lshrrev_b32 v3, 1, v12")
    A("v_lshlrev_b32 v3, 15, v3")
    A("v_and_b32 v4, 1, v12")
    A("v_lshl_add_u32 v3, v4, 6, v3")
    A("v_lshl_add_u32 v3, v11, 4, v3")
    A("s_lshl_b32 s24, s18, 18")
    A("s_lshl_b32 s25, s20, 10")
    A("s_add_u32 s24, s24, s25")
    A("s_lshl_b32 s25, s3, 8")
    A("s_add_u32 s24, s24, s25")
    A(f"s_add_u32 s24, s24, {FP}")
    A("s_add_u32 s25, s24, 16384")
    A("s_nop 2")
    for s in range(2):
        for hh in range(2):
            d = 96 + (s*2+hh)*4
            for rr in range(2):
                r = 2*hh + rr
                a0 = 64 + (s*4)*4 + r
                A(f"v_cvt_pk_bf16_f32 v{d+2*rr}, v{a0}, v{a0+4}")
                A(f"v_cvt_pk_bf16_f32 v{d+2*rr+1}, v{a0+8}, v{a0+12}")
            A(f"buffer_store_dwordx4 v[{d}:{d+3}], v3, s[12:15], s{24+s} offen offset:{hh*128}")
    A("s_endpgm")
    A("LB_ge:")
    A("v_lshlrev_b32 v3, 12, v11")
    A("v_lshl_add_u32 v3, v12, 3, v3")
    A("s_lshl_b32 s24, s3, 7")
    A("v_lshlrev_b32 v4, 9, v12")
    A("v_lshl_add_u32 v4, v11, 4, v4")
    A("s_waitcnt lgkmcnt(0)")
    A("s_mov_b32 s8, s6")
    A("s_mov_b32 s9, s7")
    srd(8, 8192)
    srd(16, 131072)
    srd(12, WS_BYTES)
    for ks in range(8):
        A(f"buffer_load_dwordx4 v[{24+4*ks}:{27+4*ks}], v4, s[8:11], 0 offen offset:{ks*64}")
    for r in range(8, 24): A(f"v_mov_b32 v{r}, 0")
    for ks in range(8):
        A(f"s_add_u32 s29, s24, {ks*16384}")
        for j in range(8):
            A(f"buffer_load_dwordx2 v[{64+2*j}:{65+2*j}], v3, s[16:19], s29 offen offset:{j*512}")
        A("s_waitcnt vmcnt(0)")
        perm16(64, 96, 40, 41)
        A("s_nop 1")
        for q in range(4):
            A(f"v_mfma_f32_16x16x32_bf16 v[{8+4*q}:{11+4*q}], v[{96+4*q}:{99+4*q}], v[{24+4*ks}:{27+4*ks}], v[{8+4*q}:{11+4*q}]")
    A("v_and_b32 v5, 15, v1")
    A("v_lshrrev_b32 v6, 4, v1")
    A("v_lshlrev_b32 v5, 10, v5")
    A("v_lshl_add_u32 v5, v6, 6, v5")
    A("s_lshl_b32 s24, s3, 8")
    A(f"s_add_u32 s24, s24, {GE}")
    A("s_nop 7")
    for q in range(4):
        A(f"buffer_store_dwordx4 v[{8+4*q}:{11+4*q}], v5, s[12:15], s24 offen offset:{q*16}")
    A("LB_end:")
    A("s_endpgm")

def stage_c():
    kbegin("stage_c_kernel")
    A("s_load_dwordx2 s[4:5], s[0:1], 32")
    A("s_load_dwordx4 s[8:11], s[0:1], 48")
    A("s_load_dwordx2 s[12:13], s[0:1], 72")
    A("s_cmp_ge_u32 s2, 256")
    A("s_cbranch_scc1 LC_end")
    lane_wave()
    A("v_lshrrev_b32 v11, 4, v1")
    A("v_and_b32 v12, 15, v1")
    A("s_mov_b32 s40, 0x05040100")
    A("s_mov_b32 s41, 0x07060302")
    A("s_lshr_b32 s20, s2, 4")
    A("s_and_b32 s21, s2, 15")
    A("s_lshr_b32 s22, s20, 3")
    A("s_and_b32 s23, s20, 7")
    A("v_lshlrev_b32 v3, 10, v11")
    A("v_lshl_add_u32 v3, v12, 4, v3")
    A("s_lshl_b32 s24, s2, 14")
    A("s_lshl_b32 s25, s3, 8")
    A("s_add_u32 s24, s24, s25")
    A(f"s_add_u32 s24, s24, {FP}")
    A("v_and_b32 v4, 7, v12")
    A("v_lshlrev_b32 v4, 10, v4")
    A("v_lshl_add_u32 v4, v11, 6, v4")
    A("s_lshl_b32 s26, s22, 13")
    A("s_add_u32 s26, s26, s25")
    A(f"s_add_u32 s26, s26, {GE}")
    A("v_lshlrev_b32 v5, 12, v11")
    A("v_lshl_add_u32 v5, v12, 3, v5")
    A("s_lshl_b32 s27, s3, 7")
    A("v_lshlrev_b32 v6, 13, v11")
    A("v_bfe_u32 v7, v12, 1, 1")
    A("v_lshl_add_u32 v6, v7, 6, v6")
    A("v_lshrrev_b32 v7, 2, v12")
    A("v_lshl_add_u32 v6, v7, 4, v6")
    A("v_and_b32 v7, 1, v12")
    A("v_lshl_add_u32 v6, v7, 3, v6")
    A("s_waitcnt lgkmcnt(0)")
    A("s_mul_i32 s28, s22, 1024000")
    A("s_add_u32 s16, s10, s28")
    A("s_addc_u32 s17, s11, 0")
    srd(16, 1024000)
    srd(4, 131072)
    srd(8, 131072)
    srd(12, WS_BYTES)
    for st in range(4):
        A(f"s_add_u32 s29, s24, {st*4096}")
        A(f"buffer_load_dwordx4 v[{24+4*st}:{27+4*st}], v3, s[12:15], s29 offen")
    for q in range(4):
        A(f"buffer_load_dwordx4 v[{40+4*q}:{43+4*q}], v4, s[12:15], s26 offen offset:{q*16}")
    RAW = 64; FR = 128
    def wfload(ks):
        A(f"s_add_u32 s29, s27, {ks*16384}")
        for j in range(8):
            r = RAW + (ks % 4)*16 + 2*j
            A(f"buffer_load_dwordx2 v[{r}:{r+1}], v5, s[4:7], s29 offen offset:{j*512}")
    def woload(ks):
        A(f"s_add_u32 s29, s27, {(ks//2)*32768 + (ks%2)*4096}")
        for j in range(8):
            r = RAW + (ks % 4)*16 + 2*j
            A(f"buffer_load_dwordx2 v[{r}:{r+1}], v6, s[8:11], s29 offen offset:{j*512}")
    for ks in range(4): wfload(ks)
    sel_matrix(16, 12, 8, ("pair",))
    A(f"v_mov_b32 v13, {f32(C0)}")
    A(f"s_mov_b32 s42, {f32(C1)}")
    A(f"s_mov_b32 s43, {f32(TANH_C)}")
    A("v_bfe_u32 v7, v12, 2, 1")
    A("v_lshlrev_b32 v14, 9, v7")
    A("v_and_b32 v7, 3, v12")
    A("v_lshl_add_u32 v14, v7, 5, v14")
    A("v_lshrrev_b32 v7, 3, v12")
    A("v_lshl_add_u32 v14, v7, 4, v14")
    A("v_lshl_add_u32 v14, v11, 2, v14")
    A("v_add_u32 v14, s27, v14")
    A("v_lshrrev_b32 v7, 3, v12")
    A("v_lshlrev_b32 v15, 9, v7")
    A("v_lshl_add_u32 v15, v11, 4, v15")
    for r in range(20, 24): A(f"v_mov_b32 v{r}, 0")
    A("s_waitcnt vmcnt(36)")
    for st in range(4):
        A(f"v_mfma_f32_16x16x32_bf16 v[20:23], v[16:19], v[{24+4*st}:{27+4*st}], v[20:23]")
    A("s_nop 7")
    gelu([20, 21], [22, 23], 13, 42)
    A("v_cvt_pk_bf16_f32 v20, v20, v21")
    A("ds_write_b32 v14, v20")
    A("s_waitcnt lgkmcnt(0)")
    A("s_barrier")
    for ks in range(8):
        rem = 24 if ks < 4 else 8*(7-ks) + 0
        A(f"ds_read_b128 v[{24+4*(ks%4)}:{27+4*(ks%4)}], v15 offset:{ks*64}")
        A(f"s_waitcnt vmcnt({24})")
        perm16(RAW + (ks % 4)*16, FR + (ks%2)*16, 40, 41)
        if ks < 4: wfload(ks+4)
        else: woload(ks-4)
        A("s_waitcnt lgkmcnt(0)")
        for q in range(4):
            w = FR + (ks%2)*16 + 4*q; x = 24 + 4*(ks%4); ac = 40 + 4*q
            A(f"v_mfma_f32_16x16x32_bf16 v[{ac}:{ac+3}], v[{w}:{w+3}], v[{x}:{x+3}], v[{ac}:{ac+3}]")
    A("s_nop 7")
    R = list(range(40, 56))
    for r in R: A(f"v_mul_f32 v{r}, s43, v{r}")
    for r in R: A(f"v_exp_f32 v{r}, v{r}")
    for r in R: A(f"v_add_f32 v{r}, 1.0, v{r}")
    for r in R: A(f"v_rcp_f32 v{r}, v{r}")
    for r in R: A(f"v_fma_f32 v{r}, v{r}, -2.0, 1.0")
    for hh in range(2):
        for rr in range(2):
            r = 2*hh + rr
            A(f"v_cvt_pk_bf16_f32 v{24+4*hh+2*rr}, v{40+r}, v{44+r}")
            A(f"v_cvt_pk_bf16_f32 v{25+4*hh+2*rr}, v{48+r}, v{52+r}")
    A("v_lshlrev_b32 v7, 4, v1")
    A("s_lshl_b32 s29, s3, 11")
    A("v_add_u32 v8, s29, v7")
    A("ds_write_b128 v8, v[24:27] offset:1024")
    A("ds_write_b128 v8, v[28:31] offset:2048")
    A("s_waitcnt lgkmcnt(0)")
    A("s_barrier")
    for r in range(40, 56): A(f"v_mov_b32 v{r}, 0")
    JF = 160
    for ks in range(8):
        A(f"ds_read_b128 v[{JF+4*ks}:{JF+3+4*ks}], v7 offset:{1024 + ks*1024}")
    for ks in range(8):
        rem = 24 if ks < 4 else 8*(7-ks)
        A(f"s_waitcnt vmcnt({rem})")
        perm16(RAW + (ks % 4)*16, FR + (ks%2)*16, 40, 41)
        if ks < 4: woload(ks+4)
        A("s_waitcnt lgkmcnt(0)")
        for q in range(4):
            w = FR + (ks%2)*16 + 4*q; x = JF + 4*ks; ac = 40 + 4*q
            A(f"v_mfma_f32_16x16x32_bf16 v[{ac}:{ac+3}], v[{w}:{w+3}], v[{x}:{x+3}], v[{ac}:{ac+3}]")
    A("v_lshrrev_b32 v7, 3, v12")
    A("v_lshlrev_b32 v3, 13, v7")
    A("v_and_b32 v7, 7, v12")
    A("v_lshl_add_u32 v3, v7, 9, v3")
    A("v_lshl_add_u32 v3, v11, 4, v3")
    A("s_lshl_b32 s24, s23, 5")
    A("s_lshr_b32 s25, s21, 1")
    A("s_lshl_b32 s25, s25, 2")
    A("s_add_u32 s24, s24, s25")
    A("s_and_b32 s25, s21, 1")
    A("s_add_u32 s24, s24, s25")
    A("s_lshl_b32 s24, s24, 12")
    A("s_add_u32 s24, s24, s27")
    A("s_nop 2")
    for hh in range(2):
        for rr in range(2):
            r = 2*hh + rr
            A(f"v_cvt_pk_bf16_f32 v{24+4*hh+2*rr}, v{40+r}, v{44+r}")
            A(f"v_cvt_pk_bf16_f32 v{25+4*hh+2*rr}, v{48+r}, v{52+r}")
        A(f"buffer_store_dwordx4 v[{24+4*hh}:{27+4*hh}], v3, s[16:19], s24 offen offset:{hh*64}")
    A("LC_end:")
    A("s_endpgm")

stage_a(); stage_b(); stage_c()
A('.section .rodata,"a"')
for name, nv in (("stage_a_kernel", 96), ("stage_b_kernel", 256), ("stage_c_kernel", 192)):
    A(f""".p2align 6
.amdhsa_kernel {name}
  .amdhsa_next_free_vgpr {nv}
  .amdhsa_next_free_sgpr 64
  .amdhsa_accum_offset {nv}
  .amdhsa_group_segment_fixed_size 0
  .amdhsa_kernarg_size 80
  .amdhsa_user_sgpr_count 2
  .amdhsa_user_sgpr_kernarg_segment_ptr 1
  .amdhsa_system_sgpr_workgroup_id_x 1
.end_amdhsa_kernel""")
open(OUT, "w").write("\n".join(L) + "\n")
```
